```python
import torch

def _softmax(x, axis=-1):
    return torch.softmax(x, dim=axis)
def _gelu(x):
    return torch.nn.functional.gelu(x, approximate="tanh")
def _silu(x):
    return torch.nn.functional.silu(x)
def _sigmoid(x):
    return torch.sigmoid(x)
def _layernorm(x, axis=-1, eps=1e-5):
    m = x.mean(dim=axis, keepdim=True)
    v = x.var(dim=axis, keepdim=True, unbiased=False)
    return (x - m) / torch.sqrt(v + eps)
def _scatter_add(tgt, idx, src, axis=0):
    return tgt.clone().index_add_(axis, idx, src)
def _segment_sum(src, seg, n):
    out = torch.zeros((n,) + src.shape[1:], dtype=src.dtype)
    return out.index_add_(0, seg, src)
def _pad(x, pw):
    flat = tuple(v for pair in reversed(pw) for v in pair)
    return torch.nn.functional.pad(x, flat)

kernel_name = 'concat_heads__sliding_block_cached__gqa_block_cached__decode'

def setup_inputs():

    _w = (lambda a: (lambda t: t.to(torch.bfloat16) if t.is_floating_point() else t)(torch.as_tensor(a)))
    def _A_setup():
        B, Sq, D = 1, 1, 1024
        Hq, Hkv, Sk, Dh = 32, 4, 65536, 128
        assert Hq % Hkv == 0, (Hq, Hkv)
        return {
            "x": _w((lambda *s: torch.randn(*s, dtype=torch.bfloat16) * 0.2)(B, Sq, D)),
            "k_cache": _w((lambda *s: torch.randn(*s, dtype=torch.bfloat16) * 3.2)(B, Hkv, Sk, Dh)),
            "v_cache": _w((lambda *s: torch.randn(*s, dtype=torch.bfloat16) * 1.6)(B, Hkv, Sk, Dh)),
            "wq": _w((lambda *s: torch.randn(*s, dtype=torch.bfloat16) * 3.2)(D, Hq * Dh) * (D ** -0.5)),
            "wo": _w((lambda *s: torch.randn(*s, dtype=torch.bfloat16) * 1.6)(Hq * Dh, D) * ((Hq * Dh) ** -0.5)),
        }
    _A_in = _A_setup()

    def _B_setup():
        B, Sq, D = 1, 1, 1024
        Hq, Hkv, Sk, Dh = 32, 4, 65536, 128
        assert Hq % Hkv == 0, (Hq, Hkv)
        return {
            "x": _w((lambda *s: torch.randn(*s, dtype=torch.bfloat16) * 0.4)(B, Sq, D)),
            "k_cache": _w((lambda *s: torch.randn(*s, dtype=torch.bfloat16) * 3.2)(B, Hkv, Sk, Dh)),
            "v_cache": _w((lambda *s: torch.randn(*s, dtype=torch.bfloat16) * 0.8)(B, Hkv, Sk, Dh)),
            "wq": _w((lambda *s: torch.randn(*s, dtype=torch.bfloat16) * 3.2)(D, Hq * Dh) * (D ** -0.5)),
            "wo": _w((lambda *s: torch.randn(*s, dtype=torch.bfloat16) * 0.8)(Hq * Dh, D) * ((Hq * Dh) ** -0.5)),
        }
    _B_in = _B_setup()

    return {
        "A_x": _A_in["x"],
        "A_k_cache": _A_in["k_cache"],
        "A_v_cache": _A_in["v_cache"],
        "A_wq": _A_in["wq"],
        "A_wo": _A_in["wo"],
        "B_x": _B_in["x"],
        "B_k_cache": _B_in["k_cache"],
        "B_v_cache": _B_in["v_cache"],
        "B_wq": _B_in["wq"],
        "B_wo": _B_in["wo"],
    }

def reference(A_x, A_k_cache, A_v_cache, A_wq, A_wo, B_x, B_k_cache, B_v_cache, B_wq, B_wo):
    def _A_ref(x, k_cache, v_cache, wq, wo):
        B, Sq, D = x.shape
        Hq, Dh = 32, 128
        Hkv, Sk = k_cache.shape[1], k_cache.shape[2]
        W = min(4096, max(256, Sk // 4))
        rep = Hq // Hkv
        q = (lambda x, *d: x.permute(*d))((x @ wq).reshape(B, Sq, Hq, Dh), 0, 2, 1, 3)
        k = (lambda x, n, axis: torch.repeat_interleave(x, n, dim=axis))(k_cache[:, :, Sk - W:, :], rep, axis=1)
        v = (lambda x, n, axis: torch.repeat_interleave(x, n, dim=axis))(v_cache[:, :, Sk - W:, :], rep, axis=1)
        scores = torch.einsum("bhqd,bhkd->bhqk", q, k) * (Dh ** -0.5)
        p = _softmax(scores, axis=-1)
        o = torch.einsum("bhqk,bhkd->bhqd", p, v)
        return (lambda x, *d: x.permute(*d))(o, 0, 2, 1, 3).reshape(B, Sq, Hq * Dh) @ wo

    def _B_ref(x, k_cache, v_cache, wq, wo):
        B, Sq, D = x.shape
        Hq, Dh = 32, 128
        Hkv = k_cache.shape[1]
        rep = Hq // Hkv
        q = (lambda x, *d: x.permute(*d))((x @ wq).reshape(B, Sq, Hq, Dh), 0, 2, 1, 3)
        k = (lambda x, n, axis: torch.repeat_interleave(x, n, dim=axis))(k_cache, rep, axis=1)
        v = (lambda x, n, axis: torch.repeat_interleave(x, n, dim=axis))(v_cache, rep, axis=1)
        scores = torch.einsum("bhqd,bhkd->bhqk", q, k) * (Dh ** -0.5)
        p = _softmax(scores, axis=-1)
        o = torch.einsum("bhqk,bhkd->bhqd", p, v)
        return (lambda x, *d: x.permute(*d))(o, 0, 2, 1, 3).reshape(B, Sq, Hq * Dh) @ wo

    a = _A_ref(A_x, A_k_cache, A_v_cache, A_wq, A_wo)
    b = _B_ref(B_x, B_k_cache, B_v_cache, B_wq, B_wo)
    return torch.concatenate([a, b], axis=-1)
```

```python
import re

TRANS = ("v_exp_f32", "v_log_f32", "v_rcp_f32", "v_rsq_f32", "v_sqrt_f32")


def regs_of(op):
    op = op.strip()
    op = op.lstrip("-")
    m = re.fullmatch(r"abs\((.*)\)", op)
    if m:
        op = m.group(1)
    m = re.fullmatch(r"([vas])(\d+)", op)
    if m:
        return [(m.group(1), int(m.group(2)))]
    m = re.fullmatch(r"([vas])\[(\d+):(\d+)\]", op)
    if m:
        return [(m.group(1), i) for i in range(int(m.group(2)), int(m.group(3)) + 1)]
    if op == "vcc":
        return [("s", "vcc")]
    if op in ("exec", "exec_hi", "exec_lo"):
        return [("s", "exec")]
    if op == "m0":
        return [("s", "m0")]
    return []


class Ins:
    __slots__ = ("text", "cls", "w", "r", "slots", "srcC", "store_data")


class Emitter:
    def __init__(self):
        self.lines = []
        self.hist = []
        self.vm = []
        self.vm_done = 0
        self.nops = 0
        self.ninstr = 0

    def parse(self, text):
        t = text.split(";")[0].strip()
        m = re.match(r"(\S+)\s*(.*)", t)
        op, rest = m.group(1), m.group(2)
        parts, depth, cur = [], 0, ""
        for ch in rest:
            if ch in "[(":
                depth += 1
            if ch in "])":
                depth -= 1
            if ch == "," and depth == 0:
                parts.append(cur.strip()); cur = ""
            else:
                cur += ch
        if cur.strip():
            parts.append(cur.strip())
        mods = ""
        if parts:
            last = parts[-1].split(None, 1)
            if len(last) == 2:
                parts[-1], mods = last[0], last[1]
        I = Ins(); I.text = text; I.w = set(); I.r = set(); I.slots = 1; I.srcC = set(); I.store_data = set()
        R = [regs_of(p) for p in parts]
        flat = lambda xs: set(sum(xs, []))
        if op == "s_nop":
            I.cls = "nop"; I.slots = int(parts[0]) + 1
        elif op.startswith("v_mfma"):
            I.cls = "mfma"; I.w = set(R[0]); I.r = flat(R[1:]); I.srcC = set(R[3])
        elif op.startswith("v_permlane"):
            I.cls = "perml"; I.w = flat(R[:2]); I.r = flat(R[:2])
        elif op.startswith("v_readfirstlane") or op.startswith("v_readlane"):
            I.cls = "rdlane"; I.w = set(R[0]); I.r = flat(R[1:])
        elif op.startswith("v_cmp"):
            I.cls = "valu"; I.w = set(R[0]); I.r = flat(R[1:])
        elif op.startswith("v_"):
            I.cls = "valu"
            if "_dpp" in op:
                I.cls = "dpp"
            if any(op.startswith(x) for x in TRANS):
                I.cls = "trans"
            I.w = set(R[0]); I.r = flat(R[1:])
            if op.startswith("v_fmac") or "_dpp" in op:
                I.r |= set(R[0])
            if op.startswith("v_cndmask") and len(parts) == 3:
                I.r.add(("s", "vcc"))
        elif op.startswith("ds_read") or op.startswith("ds_bpermute") or "_rtn_" in op:
            I.cls = "ds"; I.w = set(R[0]); I.r = flat(R[1:])
        elif op.startswith("ds_"):
            I.cls = "ds"; I.r = flat(R)
        elif op.startswith("buffer_load") or op.startswith("global_load"):
            I.cls = "vmem"
            if re.search(r"\blds\b", mods):
                I.r = flat(R) | {("s", "m0")}; I.cls = "vmemlds"
            else:
                I.w = set(R[0]); I.r = flat(R[1:])
        elif op.startswith("buffer_store"):
            I.cls = "vmem"; I.r = flat(R)
            if "x4" in op or "x3" in op:
                I.store_data = set(R[0])
        elif op.startswith("buffer_atomic"):
            I.cls = "vmem"; I.r = flat(R)
            if "sc0" in mods:
                I.w = set(R[0])
        elif op.startswith("s_"):
            I.cls = "salu"
            if op.startswith(("s_cmp", "s_waitcnt", "s_barrier", "s_branch", "s_cbranch", "s_sleep", "s_endpgm", "s_setprio", "s_bitcmp")):
                I.r = flat(R)
            else:
                I.w = set(R[0]); I.r = flat(R[1:])
                if "saveexec" in op:
                    I.w.add(("s", "exec"))
        else:
            raise ValueError("cannot parse " + text)
        return I

    def need(self, P, C):
        n = 0
        valuP = P.cls in ("valu", "dpp", "trans", "perml", "rdlane")
        valuC = C.cls in ("valu", "dpp", "trans", "perml", "rdlane")
        vw = {x for x in P.w if x[0] in "va"}
        sw = {x for x in P.w if x[0] == "s"}
        if valuP:
            if C.cls == "mfma" and vw & C.r: n = max(n, 2)
            if C.cls in ("dpp", "perml") and vw & C.r: n = max(n, 2)
            if C.cls == "rdlane" and vw & C.r: n = max(n, 1)
            if P.cls == "trans" and valuC and C.cls != "trans" and vw & C.r: n = max(n, 1)
            if sw & C.r:
                if valuC or C.cls == "mfma": n = max(n, 2)
                if C.cls in ("vmem", "vmemlds"): n = max(n, 5)
                if C.cls == "salu": n = max(n, 1)
        if P.cls == "mfma":
            if C.cls == "mfma":
                if P.w & (C.r - C.srcC): n = max(n, 8)
                if P.w & C.srcC and P.w != C.srcC: n = max(n, 6)
                if P.w & C.w and not (P.w & C.srcC): n = max(n, 8)
            elif P.w & (C.r | C.w): n = max(n, 8)
            if valuC and P.srcC & C.w: n = max(n, 3)
        if P.cls == "salu" and ("s", "m0") in P.w and C.cls == "vmemlds": n = max(n, 1)
        if P.store_data and P.store_data & C.w: n = max(n, 2)
        return n

    def __call__(self, text):
        for line in text.split("\n"):
            line = line.strip()
            if not line:
                continue
            if line.startswith(";") or line.startswith("."):
                self.lines.append(line); continue
            if line.endswith(":"):
                self.lines.append(line); continue
            I = self.parse(line)
            dist, pad = 0, 0
            for P in reversed(self.hist):
                k = self.need(P, I)
                if k - dist > pad:
                    pad = k - dist
                dist += P.slots
                if dist >= 10:
                    break
            if pad > 0:
                N = self.parse(f"s_nop {pad-1}")
                self.hist.append(N); self.lines.append(f"    s_nop {pad-1}"); self.nops += pad
            self.hist.append(I)
            self.hist = self.hist[-24:]
            self.lines.append("    " + line)
            self.ninstr += 1

    def raw(self, text):
        self.lines.append(text)

    def vm_issue(self, text, tag, optional=False):
        self(text)
        self.vm.append((tag, optional))

    def _after(self, idx):
        return sum(1 for (t, o) in self.vm[idx + 1:] if not o)

    def vm_landed(self, tag):
        idx = max(i for i, (t, o) in enumerate(self.vm) if t == tag)
        return idx < self.vm_done

    def vm_wait(self, tag):
        idx = max(i for i, (t, o) in enumerate(self.vm) if t == tag)
        if idx < self.vm_done:
            return
        n = self._after(idx)
        assert n <= 63
        self(f"s_waitcnt vmcnt({n})")
        self.vm_done = idx + 1

    def vm_pace(self, n):
        out = [i for i in range(self.vm_done, len(self.vm)) if not self.vm[i][1]]
        if len(out) <= n:
            return
        self(f"s_waitcnt vmcnt({n})")
        idx = out[len(out) - n - 1]
        self.vm_done = idx + 1

    def vm_drain(self):
        self("s_waitcnt vmcnt(0)")
        self.vm_done = len(self.vm)

    def text(self):
        return "\n".join(self.lines) + "\n"
```

```python
import sys
from emit import Emitter

KN = "concat_heads__sliding_block_cached__gqa_block_cached__decode_kernel"

HEADER = """; Fused decode attention (sliding-window branch A + full branch B), one persistent launch.
"""

WS_EPOCH = 0
WS_Q = 0x1000
WS_ML = 0x20000
WS_O = 0x100000
WS_OUT = 0x300000
WS_ST = 0x400000
WS_SIZE = 0x500000
KRING = 8
L_QRED = 4 * KRING * 4096
L_QFRAG = L_QRED + 1024
L_MAX = L_QFRAG + 4096
L_SUM = L_MAX + 512
L_ORED = L_SUM + 512
L_END = L_ORED + 1024
SRD_WQ, SRD_X, SRD_KA, SRD_VA, SRD_KB, SRD_VB, SRD_WOA, SRD_WOB, SRD_WS, SRD_OUT = 32, 36, 40, 44, 48, 52, 56, 60, 64, 68
sW = 3; sE = 30
sT = [72, 73, 74, 75]; sMASK = 76; sPLO = 77; sPHI = 78; sSCALE = 79; sL2E = 80
sG = 81; sC = 82; sTB = 83; sTA = 84; sLDS = 85; sROT = 86; sWO = 87; sCNT = 88
sTMP = [89, 90, 91, 92, 93]
sEX = 94
sM = 96
sM2 = 98
vN, vGq, vWQ, vX = 1, 2, 3, 4
vK = [5, 6, 7, 8]; vV = 9; vKR = [10, 11, 12, 13]
vLANE = 14; vA = 15
vP = 16
vMA, vMB, vLA, vLB = 50, 51, 52, 53
vS = 54
vT = [62, 63]
vF = 64
vRING = 96
NRING = 10
vML = 3
aOA, aOB, aQ, aK = 0, 32, 64, 96


def srd(n):
    return f"s[{n}:{n+3}]"


def vr(a, n):
    return f"v[{a}:{a+n-1}]" if n > 1 else f"v{a}"


def ar(a, n):
    return f"a[{a}:{a+n-1}]"


def gen(path, W=12, stamp=False, pol="nt", hstag=5, wo_pos="end", qg_after=8, nfill=3, mlg_before=4, budget=1000,
        spin_max=20000, wpol="nt", opol="sc1", xpol=""):
    e = Emitter()
    nst = [0]

    def st(name):
        if not stamp:
            return
        i = nst[0]; nst[0] += 1
        assert i < 12
        e(f"s_memrealtime s[{4+2*i}:{5+2*i}]")

    e.raw(HEADER.rstrip())
    e.raw(f"; @launch grid=(256,1,1) block=(256,1,1) lds={L_END}")
    e.raw('.amdgcn_target "amdgcn-amd-amdhsa--gfx950"\n.text')
    e.raw(f".globl {KN}\n.p2align 8\n.type {KN},@function\n{KN}:")
    e(f"""
    s_cmp_ge_u32 s2, 256
    s_cbranch_scc1 L_end
    s_lshr_b32 s89, s2, 7
    s_mul_i32 s89, s89, 40
    s_load_dwordx2 s[{SRD_X}:{SRD_X+1}], s[0:1], s89
    s_add_u32 s90, s89, 24
    s_load_dwordx2 s[{SRD_WQ}:{SRD_WQ+1}], s[0:1], s90
    s_load_dwordx2 s[{SRD_WS}:{SRD_WS+1}], s[0:1], 96
    s_load_dwordx2 s[{SRD_KA}:{SRD_KA+1}], s[0:1], 8
    s_load_dwordx2 s[{SRD_KB}:{SRD_KB+1}], s[0:1], 48
    s_load_dwordx2 s[{SRD_VA}:{SRD_VA+1}], s[0:1], 16
    s_load_dwordx2 s[{SRD_VB}:{SRD_VB+1}], s[0:1], 56
    s_load_dwordx2 s[{SRD_WOA}:{SRD_WOA+1}], s[0:1], 32
    s_load_dwordx2 s[{SRD_WOB}:{SRD_WOB+1}], s[0:1], 72
    s_load_dwordx2 s[{SRD_OUT}:{SRD_OUT+1}], s[0:1], 80
    """)
    st("start")
    e(f"""
    v_lshrrev_b32 v{vA}, 6, v0
    v_and_b32 v{vLANE}, 63, v0
    v_readfirstlane_b32 s{sW}, v{vA}
    v_and_b32 v{vN}, 15, v0
    v_lshrrev_b32 v{vGq}, 4, v{vLANE}
    v_lshrrev_b32 v{vA}, 3, v{vLANE}
    v_lshlrev_b32 v{vWQ}, 16, v{vA}
    v_and_b32 v{vA}, 7, v0
    v_lshl_add_u32 v{vWQ}, v{vA}, 4, v{vWQ}
    v_and_b32 v{vA}, 1, v0
    v_lshlrev_b32 v{vA}, 4, v{vA}
    v_lshl_add_u32 v{vX}, v{vGq}, 5, v{vA}
    s_mov_b32 s{SRD_WQ+2}, 0x800000
    s_mov_b32 s{SRD_WQ+3}, 0x20000
    s_mov_b32 s{SRD_X+2}, 2048
    s_mov_b32 s{SRD_X+3}, 0x20000
    s_bfe_u32 s89, s2, 0x10006
    s_lshl_b32 s89, s89, 9
    s_lshl_b32 s90, s{sW}, 7
    s_add_u32 s89, s89, s90
    s_lshl_b32 s91, s89, 1
    s_lshl_b32 s89, s89, 13
    s_and_b32 s{sC}, s2, 63
    s_lshl_b32 s90, s{sC}, 7
    s_add_u32 s89, s89, s90
    s_waitcnt lgkmcnt(0)
    """)
    vXF = vS
    e.vm_issue(f"buffer_load_dwordx4 {vr(vXF,4)}, v{vX}, {srd(SRD_X)}, s91 offen {xpol}", "x")
    e.vm_issue(f"buffer_load_dwordx4 {vr(vXF+4,4)}, v{vX}, {srd(SRD_X)}, s91 offen offset:128 {xpol}", "x")
    for u in range(2):
        for i in range(8):
            r = vRING + 32 * u + 4 * i
            e.vm_issue(f"buffer_load_dwordx4 {vr(r,4)}, v{vWQ}, {srd(SRD_WQ)}, s89 offen {wpol}", f"wq{u}")
            if not (u == 1 and i == 7):
                e(f"s_add_u32 s89, s89, {8192 if i < 7 else 8192 * 57}")
    e(f"s_load_dword s{sE}, s[{SRD_WS}:{SRD_WS+1}], {WS_EPOCH}")
    for (d, n) in [(SRD_KA, 0x4000000), (SRD_KB, 0x4000000), (SRD_VA, 0x4000000), (SRD_VB, 0x4000000), (SRD_WOA, 0x800000),
                   (SRD_WOB, 0x800000), (SRD_WS, WS_SIZE), (SRD_OUT, 4096)]:
        e(f"s_mov_b32 s{d+2}, {hex(n)}\ns_mov_b32 s{d+3}, 0x20000")
    e(f"""
    s_lshr_b32 s{sG}, s2, 6
    s_lshl_b32 s89, s{sC}, 2
    s_add_u32 s89, s89, s{sW}
    s_lshl_b32 s89, s89, 12
    s_lshl_b32 s90, s{sG}, 24
    s_add_u32 s{sTB}, s89, s90
    s_add_u32 s{sTA}, s{sTB}, {61440*256}
    s_mul_i32 s{sROT}, s{sG}, {hstag}
    s_mul_i32 s{sLDS}, s{sW}, {KRING*4096}
    s_mov_b32 s{sMASK}, 0x3ff
    s_mov_b32 s{sPLO}, 0x05040100
    s_mov_b32 s{sPHI}, 0x07060302
    s_mov_b32 s{sSCALE}, 0x3db504f3
    s_mov_b32 s{sL2E}, 0x3fb8aa3b
    v_lshlrev_b32 v{vV}, 4, v{vLANE}
    v_lshlrev_b32 v{vA}, 2, v{vGq}
    v_xor_b32 v{vA}, v{vA}, v{vN}
    """)
    for i in range(4):
        e(f"v_xor_b32 v{vK[i]}, {i}, v{vA}\nv_lshlrev_b32 v{vK[i]}, 4, v{vK[i]}\nv_lshl_add_u32 v{vK[i]}, v{vGq}, 8, v{vK[i]}")
    e(f"""
    v_and_b32 v{vT[0]}, 3, v{vN}
    v_lshlrev_b32 v{vT[0]}, 2, v{vT[0]}
    v_lshrrev_b32 v{vT[1]}, 2, v{vN}
    v_add_u32 v{vT[0]}, v{vT[0]}, v{vT[1]}
    v_lshlrev_b32 v{vT[0]}, 8, v{vT[0]}
    v_add_u32 v{vT[0]}, s{sLDS}, v{vT[0]}
    v_xor_b32 v{vA}, v{vGq}, v{vN}
    """)
    for j in range(4):
        e(f"v_xor_b32 v{vKR[j]}, {4*j}, v{vA}\nv_lshl_add_u32 v{vKR[j]}, v{vKR[j]}, 4, v{vT[0]}")
    e(f"v_mov_b32 v{vMA}, 0xff800000\nv_mov_b32 v{vMB}, 0xff800000\nv_mov_b32 v{vLA}, 0\nv_mov_b32 v{vLB}, 0")
    e(f"""
    s_lshr_b32 s89, s2, 1
    s_lshl_b32 s89, s89, 16
    s_and_b32 s90, s2, 1
    s_lshl_b32 s90, s90, 10
    s_add_u32 s89, s89, s90
    s_lshl_b32 s90, s{sW}, 8
    s_add_u32 s{sWO}, s89, s90
    s_waitcnt lgkmcnt(0)
    s_add_u32 s{sE}, s{sE}, 1
    """)
    for i in range(4):
        e(f"s_add_u32 s{sT[i]}, s{sE}, {i * 0x155}\ns_and_b32 s{sT[i]}, s{sT[i]}, 0x3ff")

    def tile_off(kind, t):
        if t == 0:
            return f"s{sTA}"
        e(f"s_add_u32 s92, s{sROT}, {t-1}\ns_and_b32 s92, s92, 15\ns_lshl_b32 s92, s92, 20\ns_add_u32 s92, s92, s{sTB}")
        return "s92"

    def issue_K(t):
        so = tile_off("K", t)
        e(f"s_add_u32 m0, s{sLDS}, {(t % KRING) * 4096}")
        for i in range(4):
            e.vm_issue(f"buffer_load_dwordx4 v{vK[i]}, {srd(SRD_KA if t == 0 else SRD_KB)}, {so} offen offset:{i*1024} {pol} lds", f"K{t}")

    vslot = {}
    nslot = [4]

    def take_slot(name):
        s = nslot[0] % NRING; nslot[0] += 1
        vslot[name] = vRING + 16 * s
        return vslot[name]

    def issue_V(t):
        so = tile_off("V", t)
        r = take_slot(f"V{t}")
        for i in range(4):
            e.vm_issue(f"buffer_load_dwordx4 {vr(r+4*i,4)}, v{vV}, {srd(SRD_VA if t == 0 else SRD_VB)}, {so} offen offset:{i*1024} {pol}", f"V{t}")

    def issue_WO(k):
        b, hf = k >> 1, k & 1
        r = take_slot(f"WO{k}")
        if k == 0:
            e(f"v_lshlrev_b32 v{vWQ}, 14, v{vGq}\nv_lshl_add_u32 v{vWQ}, v{vN}, 4, v{vWQ}")
        for p in range(2):
            e(f"s_add_u32 s92, s{sWO}, {(hf*4 + p*2) * 2048}")
            for q in range(2):
                e.vm_issue(f"buffer_load_dwordx4 {vr(r+8*p+4*q,4)}, v{vWQ}, {srd(SRD_WOA if b == 0 else SRD_WOB)}, s92 offen offset:{q*2048} {wpol}", f"WO{k}")

    def transpose(dst, loads, jlist=range(8)):
        ne = len(loads) // 2
        for j in jlist:
            for x in range(ne):
                e(f"v_perm_b32 v{dst + j*ne + x}, v{loads[2*x+1] + (j>>1)}, v{loads[2*x] + (j>>1)}, s{sPHI if j & 1 else sPLO}")

    def tag4(dst, src):
        for i in range(4):
            e(f"v_bfi_b32 v{dst+i}, s{sMASK}, v{vTG+i}, v{src[i]}")

    def check(acc, quads):
        first = True
        for q in quads:
            for i in range(4):
                if first:
                    e(f"v_xor_b32 v{acc}, s{sT[i]}, v{q+i}"); first = False
                else:
                    e(f"v_bitop3_b32 v{acc}, v{acc}, v{q+i}, s{sT[i]} bitop3:0xf6")
        e(f"v_and_b32 v{acc}, s{sMASK}, v{acc}\nv_cmp_ne_u32 vcc, 0, v{acc}")

    lab = [0]

    def label(p):
        lab[0] += 1
        return f"L_{p}{lab[0]}"

    def gather_retry(loads, quads, acc, sleep=2):
        Lok, Lsp, Lres = label("ok"), label("spin"), label("res")
        check(acc, quads)
        e(f"s_cbranch_vccz {Lok}")
        e(f"s_mov_b64 s[{sEX}:{sEX+1}], exec\ns_mov_b32 s{sCNT}, 0")
        e(f"{Lsp}:")
        e(f"s_and_b64 exec, exec, vcc")
        if sleep: e(f"s_sleep {sleep}")
        for l in loads: e(l)
        e("s_waitcnt vmcnt(0)")
        check(acc, quads)
        e(f"s_add_u32 s{sCNT}, s{sCNT}, 1\ns_cmp_ge_u32 s{sCNT}, {spin_max}\ns_cbranch_scc1 {Lres}")
        e(f"s_cbranch_vccnz {Lsp}")
        e(f"{Lres}:")
        e(f"s_mov_b64 exec, s[{sEX}:{sEX+1}]")
        e(f"{Lok}:")

    vTG = 46 + 200
    vTG = 0

    TAGV = [0, vX, vT[0], vT[1]]

    def set_tags():
        for i in range(4):
            e(f"v_mov_b32 v{TAGV[i]}, s{sT[i]}")

    def tag4(dst, src):
        for i in range(4):
            e(f"v_bfi_b32 v{dst+i}, s{sMASK}, v{TAGV[i]}, v{src[i]}")

    def step_wq(u):
        e.vm_wait(f"wq{u}")
        base = vRING + 32 * u
        loads = [base + 4 * i for i in range(8)]
        D = vP
        for j in range(8):
            transpose(vF, loads, [j])
        for j in range(8):
            c = "0" if u == 0 else vr(D + 4 * j, 4)
            e(f"v_mfma_f32_16x16x32_bf16 {vr(D+4*j,4)}, {vr(vXF+4*u,4)}, {vr(vF+4*j,4)}, {c}")

    def step_qpub():
        D = vP
        set_tags()
        for j in range(8):
            e(f"v_add_f32_dpp v{vF+j}, v{D+4*j+1}, v{D+4*j} row_ror:8 row_mask:0xf bank_mask:0xf")
        e(f"""
        s_lshl_b32 s89, s{sW}, 8
        s_add_u32 s89, s89, {L_QRED}
        v_lshl_add_u32 v{vA}, v{vLANE}, 5, s89
        s_mov_b64 exec, 0xff
        ds_write_b128 v{vA}, {vr(vF,4)}
        ds_write_b128 v{vA}, {vr(vF+4,4)} offset:16
        s_mov_b64 exec, -1
        s_waitcnt lgkmcnt(0)
        s_barrier
        s_cmp_lg_u32 s{sW}, 0
        s_cbranch_scc1 L_qpub_done
        v_lshlrev_b32 v{vA}, 4, v{vLANE}
        s_mov_b64 exec, 0xffff
        """)
        e(f"v_add_u32 v{vF+16}, {L_QRED}, v{vA}")
        for w in range(4):
            e(f"ds_read_b128 {vr(vF+4*w,4)}, v{vF+16} offset:{256*w}")
        e(f"""
        s_lshr_b32 s89, s2, 6
        s_lshl_b32 s89, s89, 14
        s_lshl_b32 s90, s{sC}, 8
        s_add_u32 s89, s89, s90
        s_add_u32 s89, s89, {WS_Q}
        s_waitcnt lgkmcnt(0)
        """)
        for i in range(4):
            e(f"v_add_f32 v{vF+i}, v{vF+i}, v{vF+4+i}\nv_add_f32 v{vF+8+i}, v{vF+8+i}, v{vF+12+i}")
        for i in range(4):
            e(f"v_add_f32 v{vF+i}, v{vF+i}, v{vF+8+i}")
        tag4(vF + 4, [vF + i for i in range(4)])
        e.vm_issue(f"buffer_store_dwordx4 {vr(vF+4,4)}, v{vA}, {srd(SRD_WS)}, s89 offen {opol}", "qpub", optional=True)
        e("s_mov_b64 exec, -1\ns_nop 1\nL_qpub_done:")
        st("qpub")

    QG = vF + 16
    qg_loads = []

    def issue_QG():
        e(f"""
        v_and_b32 v{vA}, 7, v{vN}
        v_lshlrev_b32 v{vA}, 9, v{vA}
        v_lshrrev_b32 v{vWQ}, 3, v{vN}
        v_lshl_add_u32 v{vA}, v{vWQ}, 7, v{vA}
        v_lshl_add_u32 v{vWQ}, v{vGq}, 5, v{vA}
        s_lshr_b32 s89, s{sW}, 1
        s_lshl_b32 s89, s89, 15
        s_and_b32 s90, s{sW}, 1
        s_lshl_b32 s90, s90, 8
        s_add_u32 s89, s89, s90
        s_lshl_b32 s90, s{sG}, 12
        s_add_u32 s89, s89, s90
        s_add_u32 s{sTMP[4]}, s89, {WS_Q}
        s_add_u32 s{sM2}, s{sTMP[4]}, 16384
        """)
        for hf in range(2):
            for q in range(2):
                so = sTMP[4] if hf == 0 else sM2
                l = f"buffer_load_dwordx4 {vr(QG+8*hf+4*q,4)}, v{vWQ}, {srd(SRD_WS)}, s{so} offen offset:{16*q} sc1"
                qg_loads.append(l)
                e.vm_issue(l, "QG")

    def step_qg():
        e.vm_wait("QG")
        st("qg_landed")
        gather_retry(qg_loads, [QG + 4 * i for i in range(4)], vA)
        for i in range(8):
            e(f"v_add_f32 v{QG+i}, v{QG+i}, v{QG+8+i}")
        for i in range(4):
            e(f"v_cvt_pk_bf16_f32 v{vF+i}, v{QG+2*i}, v{QG+2*i+1}")
        e(f"""
        s_lshl_b32 s89, s{sW}, 10
        s_add_u32 s89, s89, {L_QFRAG}
        v_lshlrev_b32 v{vA}, 6, v{vN}
        v_lshl_add_u32 v{vA}, v{vGq}, 4, v{vA}
        v_add_u32 v{vF+4}, s89, v{vA}
        ds_write_b128 v{vF+4}, {vr(vF,4)}
        v_and_b32 v{vA}, 0x1ff, v{vA}
        v_add_u32 v{vA}, {L_QFRAG}, v{vA}
        s_waitcnt lgkmcnt(0)
        s_barrier
        """)
        for f in range(8):
            e(f"ds_read_b128 {ar(aQ+4*f,4)}, v{vA} offset:{512*f}")
        st("q_ready")

    def step_K(t):
        e.vm_wait(f"K{t}")
        b = 0 if t == 0 else 1
        kb = aK + 16 * (t & 1)
        S = vS + 4 * (t & 1)
        for j in range(4):
            e(f"ds_read_b128 {ar(kb+4*j,4)}, v{vKR[j]} offset:{(t % KRING) * 4096}")
        for j in range(4):
            e(f"s_waitcnt lgkmcnt({3-j})")
            c = "0" if j == 0 else vr(S, 4)
            e(f"v_mfma_f32_16x16x32_bf16 {vr(S,4)}, {ar(kb+4*j,4)}, {ar(aQ+16*b+4*j,4)}, {c}")
        m = vMA if t == 0 else vMB
        p = vP + 2 * t
        e(f"""
        v_max3_f32 v{m}, v{S}, v{S+1}, v{m}
        v_max3_f32 v{m}, v{S+2}, v{S+3}, v{m}
        v_cvt_pk_bf16_f32 v{p}, v{S}, v{S+1}
        v_cvt_pk_bf16_f32 v{p+1}, v{S+2}, v{S+3}
        v_lshlrev_b32 v{S}, 16, v{p}
        v_and_b32 v{S+1}, 0xffff0000, v{p}
        v_lshlrev_b32 v{S+2}, 16, v{p+1}
        v_and_b32 v{S+3}, 0xffff0000, v{p+1}
        v_mul_f32 v{S}, s{sSCALE}, v{S}
        v_mul_f32 v{S+1}, s{sSCALE}, v{S+1}
        v_mul_f32 v{S+2}, s{sSCALE}, v{S+2}
        v_mul_f32 v{S+3}, s{sSCALE}, v{S+3}
        v_cvt_pk_bf16_f32 v{p}, v{S}, v{S+1}
        v_cvt_pk_bf16_f32 v{p+1}, v{S+2}, v{S+3}
        """)

    def xreduce(op, regs, tmp):
        for sw in ("v_permlane32_swap_b32", "v_permlane16_swap_b32"):
            for k, r in enumerate(regs):
                e(f"v_mov_b32 v{tmp+k}, v{r}")
            for k, r in enumerate(regs):
                e(f"{sw} v{tmp+k}, v{r}")
            for k, r in enumerate(regs):
                e(f"{op} v{r}, v{tmp+k}, v{r}")

    def lds_xch(ra, rb, off):
        e(f"""
        v_cmp_eq_u32 vcc, 1, v{vGq}
        s_lshl_b32 s89, s{sW}, 2
        s_add_u32 s89, s89, {off}
        v_lshl_add_u32 v{vA}, v{vLANE}, 4, s89
        v_cndmask_b32 v{vS}, v{ra}, v{rb}, vcc
        s_mov_b32 exec_hi, 0
        ds_write_b32 v{vA}, v{vS}
        s_mov_b64 exec, -1
        s_waitcnt lgkmcnt(0)
        s_barrier
        """)

    def step_max():
        st("k_done")
        xreduce("v_max_f32", [vMA, vMB], vS)
        lds_xch(vMA, vMB, L_MAX)
        e(f"""
        v_lshlrev_b32 v{vA}, 4, v{vN}
        v_add_u32 v{vA}, {L_MAX}, v{vA}
        ds_read_b128 {vr(vS,4)}, v{vA}
        ds_read_b128 {vr(vS+4,4)}, v{vA} offset:256
        s_waitcnt lgkmcnt(0)
        v_max3_f32 v{vMA}, v{vS}, v{vS+1}, v{vS+2}
        v_max3_f32 v{vMB}, v{vS+4}, v{vS+5}, v{vS+6}
        v_max_f32 v{vMA}, v{vMA}, v{vS+3}
        v_max_f32 v{vMB}, v{vMB}, v{vS+7}
        v_cvt_pk_bf16_f32 v{vS}, v{vMA}, v{vMB}
        v_lshlrev_b32 v{vMA}, 16, v{vS}
        v_and_b32 v{vMB}, 0xffff0000, v{vS}
        v_mul_f32 v{vMA}, s{sSCALE}, v{vMA}
        v_mul_f32 v{vMB}, s{sSCALE}, v{vMB}
        v_cvt_pk_bf16_f32 v{vS}, v{vMA}, v{vMB}
        v_lshlrev_b32 v{vMA}, 16, v{vS}
        v_and_b32 v{vMB}, 0xffff0000, v{vS}
        v_mul_f32 v{vKR[0]}, s{sL2E}, v{vMA}
        v_mul_f32 v{vKR[1]}, s{sL2E}, v{vMB}
        """)

    def step_P(ts):
        for t in ts:
            S = vS + 4 * (t & 1)
            p = vP + 2 * t
            mc = vKR[0] if t == 0 else vKR[1]
            l = vLA if t == 0 else vLB
            e(f"""
            v_lshlrev_b32 v{S}, 16, v{p}
            v_and_b32 v{S+1}, 0xffff0000, v{p}
            v_lshlrev_b32 v{S+2}, 16, v{p+1}
            v_and_b32 v{S+3}, 0xffff0000, v{p+1}
            """)
            for i in range(4):
                e(f"v_fma_f32 v{S+i}, v{S+i}, s{sL2E}, -v{mc}")
            for i in range(4):
                e(f"v_exp_f32 v{S+i}, v{S+i}")
            e(f"""
            v_cvt_pk_bf16_f32 v{p}, v{S}, v{S+1}
            v_cvt_pk_bf16_f32 v{p+1}, v{S+2}, v{S+3}
            v_add_f32 v{S}, v{S}, v{S+1}
            v_add_f32 v{S+2}, v{S+2}, v{S+3}
            v_add_f32 v{l}, v{l}, v{S}
            v_add_f32 v{l}, v{l}, v{S+2}
            """)

    def step_ml():
        xreduce("v_add_f32", [vLA, vLB], vS)
        lds_xch(vLA, vLB, L_SUM)
        e(f"""
        s_cmp_lg_u32 s{sW}, 0
        s_cbranch_scc1 L_ml_done
        v_lshlrev_b32 v{vA}, 4, v{vN}
        v_add_u32 v{vA}, {L_SUM}, v{vA}
        ds_read_b128 {vr(vS,4)}, v{vA}
        ds_read_b128 {vr(vS+4,4)}, v{vA} offset:256
        s_lshl_b32 s89, s{sG}, 13
        s_lshl_b32 s90, s{sC}, 4
        s_add_u32 s89, s89, s90
        s_add_u32 s89, s89, {WS_ML}
        v_lshlrev_b32 v{vA}, 10, v{vN}
        s_waitcnt lgkmcnt(0)
        v_add_f32 v{vS}, v{vS}, v{vS+1}
        v_add_f32 v{vS+2}, v{vS+2}, v{vS+3}
        v_add_f32 v{vS+4}, v{vS+4}, v{vS+5}
        v_add_f32 v{vS+6}, v{vS+6}, v{vS+7}
        v_add_f32 v{vLA}, v{vS}, v{vS+2}
        v_add_f32 v{vLB}, v{vS+4}, v{vS+6}
        """)
        tag4(vS, [vMA, vLA, vMB, vLB])
        e("s_mov_b64 exec, 0xff")
        e.vm_issue(f"buffer_store_dwordx4 {vr(vS,4)}, v{vA}, {srd(SRD_WS)}, s89 offen {opol}", "mlpub", optional=True)
        e("s_mov_b64 exec, -1\ns_nop 1\nL_ml_done:")
        st("p_done")

    first_pv = [True]

    def step_VA():
        e.vm_wait("V0")
        r = vslot["V0"]
        transpose(vF, [r, r + 4, r + 8, r + 12])
        for j in range(8):
            e(f"v_mfma_f32_16x16x16_bf16 {ar(aOA+4*j,4)}, {vr(vF+2*j,2)}, {vr(vP,2)}, 0")

    def step_V(p):
        t0, t1 = 1 + 2 * p, 2 + 2 * p
        e.vm_wait(f"V{t1}")
        r0, r1 = vslot[f"V{t0}"], vslot[f"V{t1}"]
        loads = [r0 + 4 * i for i in range(4)] + [r1 + 4 * i for i in range(4)]
        transpose(vF, loads, [0])
        for j in range(8):
            if j < 7:
                transpose(vF, loads, [j + 1])
            c = "0" if p == 0 else ar(aOB + 4 * j, 4)
            e(f"v_mfma_f32_16x16x32_bf16 {ar(aOB+4*j,4)}, {vr(vF+4*j,4)}, {vr(vP+2*t0,4)}, {c}")

    MLG = 4
    MLG = vK[1]
    MLG = vMA
    mlg_loads = []
    vWT = [vK[0], vK[1], vK[2], vK[3]]

    def issue_MLG():
        e(f"""
        s_lshr_b32 s89, s2, 3
        s_lshl_b32 s89, s89, 10
        s_add_u32 s{sTMP[4]}, s89, {WS_ML}
        """)
        l = f"buffer_load_dwordx4 {vr(MLG,4)}, v{vV}, {srd(SRD_WS)}, s{sTMP[4]} offen sc1"
        mlg_loads.append(l)
        e.vm_issue(l, "MLG")

    def full_reduce(op, regs, tmp):
        xreduce(op, regs, tmp)
        for ror in (8, 4, 2, 1):
            for r in regs:
                e(f"{op}_dpp v{r}, v{r}, v{r} row_ror:{ror} row_mask:0xf bank_mask:0xf")

    def step_mlg():
        e.vm_wait("MLG")
        gather_retry(mlg_loads, [MLG], vA)
        a, b2 = vS, vS + 1
        e(f"""
        v_and_b32 v{MLG}, 0xffff0000, v{MLG}
        v_and_b32 v{MLG+2}, 0xffff0000, v{MLG+2}
        v_mov_b32 v{a}, v{MLG}
        v_mov_b32 v{b2}, v{MLG+2}
        """)
        full_reduce("v_max_f32", [a, b2], vS + 2)
        e(f"""
        v_sub_f32 v{MLG}, v{MLG}, v{a}
        v_sub_f32 v{MLG+2}, v{MLG+2}, v{b2}
        v_mul_f32 v{MLG}, s{sL2E}, v{MLG}
        v_mul_f32 v{MLG+2}, s{sL2E}, v{MLG+2}
        v_exp_f32 v{MLG}, v{MLG}
        v_exp_f32 v{MLG+2}, v{MLG+2}
        v_mul_f32 v{a}, v{MLG}, v{MLG+1}
        v_mul_f32 v{b2}, v{MLG+2}, v{MLG+3}
        """)
        full_reduce("v_add_f32", [a, b2], vS + 2)
        e(f"""
        v_rcp_f32 v{a}, v{a}
        v_rcp_f32 v{b2}, v{b2}
        s_lshl_b32 s89, s{sW}, 6
        v_lshrrev_b32 v{vA}, 3, v{vLANE}
        v_lshl_add_u32 v{vA}, v{vA}, 2, s89
        v_mul_f32 v{MLG}, v{MLG}, v{a}
        v_mul_f32 v{MLG+2}, v{MLG+2}, v{b2}
        ds_bpermute_b32 v{vWT[0]}, v{vA}, v{MLG}
        ds_bpermute_b32 v{vWT[1]}, v{vA}, v{MLG} offset:32
        ds_bpermute_b32 v{vWT[2]}, v{vA}, v{MLG+2}
        ds_bpermute_b32 v{vWT[3]}, v{vA}, v{MLG+2} offset:32
        s_waitcnt lgkmcnt(0)
        """)

    order = [("K", t) for t in range(KRING)]
    order.insert(qg_after, ("QG", 0))
    order += [("V", t) for t in range(nfill)]
    order += [("K", t) for t in range(KRING, 17)]
    order += [("V", t) for t in range(nfill, 17)]
    wo = [("WO", k) for k in range(4)]
    if wo_pos == "end":
        order += wo
        order.insert(len(order) - 4 - mlg_before, ("MLG", 0))
    else:
        raise NotImplementedError
    steps = [("wq0", "wq0", 250, lambda: step_wq(0)), ("wq1", "wq1", 250, lambda: step_wq(1)), ("qpub", None, 300, step_qpub),
             ("qg", "QG", 400, step_qg)]
    steps += [(f"K{t}", f"K{t}", 260, (lambda t=t: step_K(t))) for t in range(17)]
    steps += [("max", None, 350, step_max)]
    pch = [[0, 1, 2, 3, 4], [5, 6, 7, 8, 9, 10], [11, 12, 13, 14, 15, 16]]
    steps += [(f"P{i}", None, 95 * len(ch), (lambda ch=ch: step_P(ch))) for i, ch in enumerate(pch)]
    steps += [("ml", None, 300, step_ml), ("V0", "V0", 200, step_VA)]
    vsteps = [(f"VP{p}", f"V{2+2*p}", 300, (lambda p=p: step_V(p))) for p in range(8)]
    steps += vsteps
    done = set()
    issued = {"wq0", "wq1"}
    si = [0]
    mlg_state = [0]

    def run_step():
        name, need, cost, fn = steps[si[0]]
        assert need is None or need in issued, (name, need)
        fn(); done.add(name); si[0] += 1
        return cost

    def freed_by(item):
        k, t = item
        if k == "K" and t >= KRING:
            return f"K{t-KRING}"
        if k in ("V", "WO"):
            idx = nslot[0] - NRING
            if idx < 0: return None
            if idx < 4: return f"wq{idx//2}"
            pv = idx - 4
            if pv <= 16:
                return "V0" if pv == 0 else f"VP{(pv-1)//2}"
            raise AssertionError
        if k == "QG":
            return "qpub"
        if k == "MLG":
            return "ml"
        return None

    for item in order:
        dep = freed_by(item)
        while dep is not None and dep not in done:
            run_step()
        k, t = item
        nl = 1 if k == "MLG" else 4
        e.vm_pace(W - nl)
        e.raw(f"; ---- issue {k}{t}")
        {"K": issue_K, "V": issue_V, "WO": issue_WO, "QG": lambda t: issue_QG(), "MLG": lambda t: issue_MLG()}[k](t)
        issued.add({"QG": "QG", "MLG": "MLG"}.get(k, f"{k}{t}"))
        spent = 0
        if "MLG" in issued and mlg_state[0] == 0 and e.vm_landed("MLG"):
            e.raw("; ---- step mlg"); step_mlg(); mlg_state[0] = 1; spent += 500
        while si[0] < len(steps) and spent < budget:
            name, need, cost, fn = steps[si[0]]
            if need is not None and (need not in issued or not e.vm_landed(need)):
                break
            spent += run_step()
    while si[0] < len(steps):
        if mlg_state[0] == 0 and steps[si[0]][0] == "VP7":
            e.raw("; ---- step mlg"); step_mlg(); mlg_state[0] = 1
        run_step()
    if mlg_state[0] == 0:
        step_mlg()

    st("v_done")
    e(f"""
    v_lshlrev_b32 v{vA}, 9, v{vN}
    v_lshl_add_u32 v{vA}, v{vGq}, 7, v{vA}
    v_add_u32 v{vA}, s{sLDS}, v{vA}
    v_and_b32 v{vS}, 7, v{vN}
    v_lshlrev_b32 v{vS}, 4, v{vS}
    """)
    for j in range(8):
        e(f"v_xor_b32 v{vF+j}, {16*j}, v{vS}\nv_add_u32 v{vF+j}, v{vF+j}, v{vA}")
    e("s_mov_b32 s96, 0x00ff00ff\ns_mov_b32 s97, 0x00ff00ff\ns_mov_b64 exec, s[96:97]")
    for j in range(8):
        e(f"ds_write_b128 v{vF+j}, {ar(aOA+4*j,4)}")
    for j in range(8):
        e(f"ds_write_b128 v{vF+j}, {ar(aOB+4*j,4)} offset:4096")
    e("s_mov_b64 exec, -1")
    e(f"""
    s_lshl_b32 s89, s{sW}, 1
    v_lshrrev_b32 v{vS}, 5, v{vLANE}
    v_add_u32 v{vS}, s89, v{vS}
    v_xor_b32 v{vA}, v{vS}, v{vLANE}
    v_lshlrev_b32 v{vA}, 4, v{vA}
    s_lshl_b32 s89, s{sW}, 10
    v_add_u32 v{vA}, s89, v{vA}
    v_add_u32 v{vS+1}, {2*KRING*4096}, v{vA}
    v_lshrrev_b32 v{vS+2}, 3, v{vLANE}
    v_lshlrev_b32 v{vS+2}, 13, v{vS+2}
    v_and_b32 v{vS+3}, 7, v{vLANE}
    v_lshl_add_u32 v{vS+2}, v{vS+3}, 4, v{vS+2}
    s_lshl_b32 s89, s{sG}, 18
    s_lshl_b32 s90, s{sW}, 16
    s_add_u32 s89, s89, s90
    s_lshl_b32 s90, s{sC}, 7
    s_add_u32 s89, s89, s90
    s_add_u32 s89, s89, {WS_O}
    s_add_u32 s90, s89, 0x100000
    s_waitcnt lgkmcnt(0)
    s_barrier
    """)
    for b in range(2):
        for w in range(4):
            e(f"ds_read_b128 {vr(vF+16*b+4*w,4)}, v{vA if w < 2 else vS+1} offset:{(w&1)*KRING*4096 + b*4096}")
    for b in range(2):
        e(f"s_waitcnt lgkmcnt({4-4*b})")
        F = vF + 16 * b
        for i in range(4):
            e(f"v_add_f32 v{F+i}, v{F+i}, v{F+4+i}\nv_add_f32 v{F+8+i}, v{F+8+i}, v{F+12+i}")
        for i in range(4):
            e(f"v_add_f32 v{F+i}, v{F+i}, v{F+8+i}")
        tag4(F + 4, [F + i for i in range(4)])
        e.vm_issue(f"buffer_store_dwordx4 {vr(F+4,4)}, v{vS+2}, {srd(SRD_WS)}, s{89+b} offen {opol}", "opub")
    st("o_pub")
    GO = vP
    e(f"""
    s_lshr_b32 s89, s2, 1
    s_lshl_b32 s89, s89, 13
    s_lshl_b32 s90, s{sW}, 11
    s_add_u32 s89, s89, s90
    s_add_u32 s{sTMP[4]}, s89, {WS_O}
    s_add_u32 s{sM2}, s{sTMP[4]}, 0x100000
    """)
    og = []
    for b in range(2):
        for i in range(2):
            l = f"buffer_load_dwordx4 {vr(GO+8*b+4*i,4)}, v{vV}, {srd(SRD_WS)}, s{sTMP[4] if b == 0 else sM2} offen offset:{1024*i} sc1"
            og.append(l); e.vm_issue(l, "OG")
    free = [s for s in range(NRING) if vRING + 16 * s not in [vslot[f"WO{k}"] for k in range(4)]]
    FB = next(vRING + 16 * s for s in free if s + 1 in free)
    for b in range(2):
        e.vm_wait(f"WO{2*b+1}")
        r0, r1 = vslot[f"WO{2*b}"], vslot[f"WO{2*b+1}"]
        transpose(vF if b == 0 else FB, [r0 + 4 * i for i in range(4)] + [r1 + 4 * i for i in range(4)])
    AF = vP + 16
    for i in range(8):
        e(f"v_mov_b32 v{AF+i}, 0")
    st("wo_ready")
    e.vm_wait("OG")
    gather_retry(og, [GO + 4 * i for i in range(4)], vA, sleep=1)
    st("og_ok")
    for b in range(2):
        for r in range(4):
            e(f"v_mul_f32 v{GO+8*b+r}, v{vWT[2*b]}, v{GO+8*b+r}")
        for r in range(4):
            e(f"v_fmac_f32 v{GO+8*b+r}, v{vWT[2*b+1]}, v{GO+8*b+4+r}")
    for r in range(4):
        e(f"v_permlane32_swap_b32 v{GO+r}, v{GO+8+r}")
    for r in range(4):
        e(f"v_add_f32 v{GO+r}, v{GO+r}, v{GO+8+r}")
    e(f"""
    v_permlane16_swap_b32 v{GO}, v{GO+1}
    v_permlane16_swap_b32 v{GO+2}, v{GO+3}
    v_add_f32 v{GO}, v{GO}, v{GO+1}
    v_add_f32 v{GO+2}, v{GO+2}, v{GO+3}
    v_lshrrev_b32 v{vS}, 5, v{vLANE}
    v_and_b32 v{vS+1}, 1, v{vGq}
    v_lshlrev_b32 v{vS}, 5, v{vS}
    v_lshl_add_u32 v{vS}, v{vS+1}, 3, v{vS}
    v_add_f32_dpp v{GO}, v{GO}, v{GO} row_ror:8 row_mask:0xf bank_mask:0xf
    v_add_f32_dpp v{GO+2}, v{GO+2}, v{GO+2} row_ror:8 row_mask:0xf bank_mask:0xf
    v_and_b32 v{vS+1}, 7, v{vLANE}
    v_add_u32 v{vS}, v{vS}, v{vS+1}
    s_lshl_b32 s89, s{sW}, 2
    s_add_u32 s89, s89, {L_ORED}
    v_lshl_add_u32 v{vS}, v{vS}, 4, s89
    s_mov_b64 exec, s[96:97]
    ds_write_b32 v{vS}, v{GO}
    ds_write_b32 v{vS}, v{GO+2} offset:256
    s_mov_b64 exec, -1
    v_lshrrev_b32 v{vS}, 3, v{vN}
    v_lshlrev_b32 v{vS}, 5, v{vS}
    v_lshl_add_u32 v{vS}, v{vGq}, 3, v{vS}
    v_add_u32 v{vS}, v{vS}, v{vS+1}
    v_lshlrev_b32 v{vS}, 4, v{vS}
    v_add_u32 v{vS}, {L_ORED}, v{vS}
    s_waitcnt lgkmcnt(0)
    s_barrier
    ds_read_b128 {vr(GO,4)}, v{vS}
    s_waitcnt lgkmcnt(0)
    v_add_f32 v{GO}, v{GO}, v{GO+1}
    v_add_f32 v{GO+2}, v{GO+2}, v{GO+3}
    v_add_f32 v{GO}, v{GO}, v{GO+2}
    v_mov_b32_dpp v{GO+1}, v{GO} quad_perm:[1,0,3,2] row_mask:0xf bank_mask:0xf
    v_cvt_pk_bf16_f32 v{GO}, v{GO}, v{GO+1}
    """)
    for t in range(4):
        e(f"v_mov_b32_dpp v{AF+t}, v{GO} row_newbcast:{2*t} row_mask:0xf bank_mask:0x3")
        e(f"v_mov_b32_dpp v{AF+4+t}, v{GO} row_newbcast:{8+2*t} row_mask:0xf bank_mask:0xc")
    D = vslot["WO0"], vslot["WO1"]
    Dj = [D[j >> 2] + 4 * (j & 3) for j in range(8)]
    for j in range(8):
        e(f"v_mfma_f32_16x16x32_bf16 {vr(Dj[j],4)}, {vr(AF,4)}, {vr(vF+4*j,4)}, 0")
    for j in range(8):
        e(f"v_mfma_f32_16x16x32_bf16 {vr(Dj[j],4)}, {vr(AF+4,4)}, {vr(FB+4*j,4)}, {vr(Dj[j],4)}")
    e(f"""
    v_lshrrev_b32 v{vS}, 1, v{vGq}
    v_lshlrev_b32 v{vS}, 19, v{vS}
    v_lshl_add_u32 v{vS}, v{vN}, 12, v{vS}
    v_and_b32 v{vS+1}, 1, v{vGq}
    v_lshl_add_u32 v{vS}, v{vS+1}, 4, v{vS}
    v_cmp_eq_u32 vcc, 1, v{vS+1}
    s_and_b32 s89, s2, 1
    s_lshl_b32 s89, s89, 18
    s_lshl_b32 s90, s{sW}, 16
    s_add_u32 s89, s89, s90
    s_lshr_b32 s90, s2, 1
    s_lshl_b32 s90, s90, 5
    s_add_u32 s89, s89, s90
    s_add_u32 s89, s89, {WS_OUT}
    """)
    for t in range(4):
        e(f"v_cndmask_b32 v{GO+t}, v{Dj[t]}, v{Dj[4+t]}, vcc")
    tag4(GO + 4, [GO + t for t in range(4)])
    e.vm_issue(f"buffer_store_dwordx4 {vr(GO+4,4)}, v{vS}, {srd(SRD_WS)}, s89 offen {opol}", "outpub")
    st("out_pub")
    e(f"s_cmp_lg_u32 s{sW}, 0\ns_cbranch_scc1 L_fin")
    e(f"s_lshl_b32 s89, s2, 12\ns_add_u32 s{sTMP[4]}, s89, {WS_OUT}")
    R = vF
    rg = []
    for i in range(4):
        l = f"buffer_load_dwordx4 {vr(R+4*i,4)}, v{vV}, {srd(SRD_WS)}, s{sTMP[4]} offen offset:{1024*i} sc1"
        rg.append(l); e.vm_issue(l, "RG")
    e.vm_wait("RG")
    gather_retry(rg, [R + 4 * i for i in range(4)], vA, sleep=1)
    for t in range(4):
        e(f"v_add_f32 v{R+t}, v{R+t}, v{R+4+t}\nv_add_f32 v{R+8+t}, v{R+8+t}, v{R+12+t}")
    for t in range(4):
        e(f"v_add_f32 v{R+t}, v{R+t}, v{R+8+t}")
    e(f"""
    v_permlane32_swap_b32 v{R}, v{R+2}
    v_permlane32_swap_b32 v{R+1}, v{R+3}
    v_add_f32 v{R}, v{R}, v{R+2}
    v_add_f32 v{R+1}, v{R+1}, v{R+3}
    v_and_b32 v{vS}, 1, v{vLANE}
    v_lshlrev_b32 v{vS}, 3, v{vS}
    v_permlane16_swap_b32 v{R}, v{R+1}
    v_add_f32 v{R}, v{R}, v{R+1}
    v_lshl_add_u32 v{vS}, v{vGq}, 1, v{vS}
    s_lshl_b32 s89, s2, 4
    v_add_f32_dpp v{R}, v{R}, v{R} row_ror:8 row_mask:0xf bank_mask:0xf
    v_add_f32_dpp v{R}, v{R}, v{R} row_ror:4 row_mask:0xf bank_mask:0xf
    v_add_f32_dpp v{R}, v{R}, v{R} row_ror:2 row_mask:0xf bank_mask:0xf
    v_cvt_pk_bf16_f32 v{R}, v{R}, v{R}
    s_mov_b32 s96, 0x00030003
    s_mov_b32 s97, 0x00030003
    s_mov_b64 exec, s[96:97]
    buffer_store_short v{R}, v{vS}, {srd(SRD_OUT)}, s89 offen
    s_cmp_lg_u32 s2, 0
    s_cbranch_scc1 L_fin
    s_mov_b64 exec, 1
    v_mov_b32 v{R+1}, s{sE}
    v_mov_b32 v{R+2}, 0
    buffer_store_dword v{R+1}, v{R+2}, {srd(SRD_WS)}, 0 offen offset:{WS_EPOCH} sc1
    L_fin:
    """)
    if stamp:
        st("end")
        n = nst[0]
        e(f"s_getreg_b32 s89, hwreg(HW_REG_XCC_ID)\ns_waitcnt lgkmcnt(0)\ns_mov_b64 exec, 1")
        e(f"s_lshl_b32 s90, s2, 2\ns_add_u32 s90, s90, s{sW}\ns_lshl_b32 s90, s90, 6\ns_add_u32 s90, s90, {WS_ST}\nv_mov_b32 v1, 0")
        for i in range(n):
            e(f"v_mov_b32 v2, s{4+2*i}\nbuffer_store_dword v2, v1, {srd(SRD_WS)}, s90 offen offset:{4*i}\ns_nop 1")
        e(f"v_mov_b32 v2, s89\nbuffer_store_dword v2, v1, {srd(SRD_WS)}, s90 offen offset:60")
    e("L_end:\ns_endpgm")
    e.raw('.section .rodata,"a"\n.p2align 6')
    e.raw(f""".amdhsa_kernel {KN}
  .amdhsa_next_free_vgpr 384
  .amdhsa_next_free_sgpr 102
  .amdhsa_accum_offset 256
  .amdhsa_group_segment_fixed_size 0
  .amdhsa_kernarg_size 104
  .amdhsa_user_sgpr_count 2
  .amdhsa_user_sgpr_kernarg_segment_ptr 1
  .amdhsa_system_sgpr_workgroup_id_x 1
  .amdhsa_float_denorm_mode_32 3
.end_amdhsa_kernel""")
    open(path, "w").write(e.text())
    return e


if __name__ == "__main__":
    import os
    if len(sys.argv) > 1 and sys.argv[1].endswith(".txt"):
        os.makedirs("kk", exist_ok=True)
        V = eval(open(sys.argv[1]).read())
        for k, a in V.items():
            em = gen(f"kk/{k}.s", **a)
            print(k, "instr", em.ninstr, "nops", em.nops)
    else:
        em = gen(sys.argv[1] if len(sys.argv) > 1 else "out.s")
        print("instr", em.ninstr, "nops", em.nops)
```
